```python
import torch

def _softmax(x, axis=-1):
    return torch.softmax(x, dim=axis)
def _gelu(x):
    return torch.nn.functional.gelu(x, approximate="tanh")
def _silu(x):
    return torch.nn.functional.silu(x)
def _sigmoid(x):
    return torch.sigmoid(x)
def _layernorm(x, axis=-1, eps=1e-5):
    m = x.mean(dim=axis, keepdim=True)
    v = x.var(dim=axis, keepdim=True, unbiased=False)
    return (x - m) / torch.sqrt(v + eps)
def _scatter_add(tgt, idx, src, axis=0):
    return tgt.clone().index_add_(axis, idx, src)
def _segment_sum(src, seg, n):
    out = torch.zeros((n,) + src.shape[1:], dtype=src.dtype)
    return out.index_add_(0, seg, src)
def _pad(x, pw):
    flat = tuple(v for pair in reversed(pw) for v in pair)
    return torch.nn.functional.pad(x, flat)

kernel_name = 'gated_mix__linear_kernel_hedgehog__glu_gated_geglu__prompt'

def setup_inputs():

    _w = (lambda a: (lambda t: t.to(torch.bfloat16) if t.is_floating_point() else t)(torch.as_tensor(a)))
    def _A_setup():
        B, S, D, H = 1, 2048, 448, 16
        Dh = D // H
        return {
            "x": _w((lambda *s: torch.randn(*s, dtype=torch.bfloat16) * 0.05)(B, S, D)),
            "wqkv": _w((lambda *s: torch.randn(*s, dtype=torch.bfloat16) * 0.8)(D, 3 * D)),
            "w_phi": _w((lambda *s: torch.randn(*s, dtype=torch.bfloat16) * 0.8)(H, Dh, Dh) * (Dh ** -0.5)),
            "wo": _w((lambda *s: torch.randn(*s, dtype=torch.bfloat16) * 0.05)(D, D)),
        }
    _A_in = _A_setup()

    def _B_setup():
        B, S, Dm, Df = 1, 2048, 448, 1792
        return {
            "x": _w((lambda *s: torch.randn(*s, dtype=torch.bfloat16) * 0.05)(B, S, Dm)),
            "w_gate": _w((lambda *s: torch.randn(*s, dtype=torch.bfloat16) * 1.6)(Dm, Df) * (Dm ** -0.5)),
            "w_up": _w((lambda *s: torch.randn(*s, dtype=torch.bfloat16) * 1.6)(Dm, Df) * (Dm ** -0.5)),
            "w_down": _w((lambda *s: torch.randn(*s, dtype=torch.bfloat16) * 1.6)(Df, Dm) * (Df ** -0.5)),
        }
    _B_in = _B_setup()

    return {
        "A_x": _A_in["x"],
        "A_wqkv": _A_in["wqkv"],
        "A_w_phi": _A_in["w_phi"],
        "A_wo": _A_in["wo"],
        "B_x": _B_in["x"],
        "B_w_gate": _B_in["w_gate"],
        "B_w_up": _B_in["w_up"],
        "B_w_down": _B_in["w_down"],
        "gate_w": _w((lambda *s: torch.randn(*s, dtype=torch.bfloat16) * 0.05)(448) * 16.0),
    }

def reference(A_x, A_wqkv, A_w_phi, A_wo, B_x, B_w_gate, B_w_up, B_w_down, gate_w):
    def _A_ref(x, wqkv, w_phi, wo):
        B, S, D = x.shape
        H = 16; Dh = D // H
        qkv = (lambda x, *d: x.permute(*d))((x @ wqkv).reshape(B, S, 3, H, Dh), 2, 0, 3, 1, 4)
        q, k, v = qkv[0], qkv[1], qkv[2]
        pq = torch.einsum("bhsd,hdf->bhsf", q, w_phi)
        pk = torch.einsum("bhsd,hdf->bhsf", k, w_phi)
        phi_q = torch.concatenate([_softmax(pq, axis=-1), _softmax(-pq, axis=-1)], axis=-1)
        phi_k = torch.concatenate([_softmax(pk, axis=-1), _softmax(-pk, axis=-1)], axis=-1)
        kv = torch.einsum("bhsf,bhsd->bhfd", phi_k, v)
        z  = torch.einsum("bhsf->bhf", phi_k)
        num = torch.einsum("bhqf,bhfd->bhqd", phi_q, kv)
        den = torch.einsum("bhqf,bhf->bhq", phi_q, z)[..., None] + 1e-6
        o = num / den
        return (lambda x, *d: x.permute(*d))(o, 0, 2, 1, 3).reshape(B, S, D) @ wo

    def _B_ref(x, w_gate, w_up, w_down):
        g = torch.einsum("bsd,df->bsf", x, w_gate)
        u = torch.einsum("bsd,df->bsf", x, w_up)
        h = _gelu(g) * u
        return torch.einsum("bsf,fd->bsd", h, w_down)

    x = A_x
    g = _sigmoid((x * gate_w).sum(-1, keepdims=True))
    a = _A_ref(x, A_wqkv, A_w_phi, A_wo)
    b = _B_ref(x, B_w_gate, B_w_up, B_w_down)
    return g * a + (1 - g) * b
```

```python
import re

TRANS = ('v_exp_f32', 'v_log_f32', 'v_rcp_f32', 'v_rsq_f32', 'v_sqrt_f32', 'v_sin_f32', 'v_cos_f32')

def regs_of(tok):
    tok = tok.strip()
    tok = tok.lstrip('-')
    m = re.fullmatch(r'abs\((.*)\)', tok)
    if m: tok = m.group(1)
    tok = tok.strip('|')
    m = re.fullmatch(r'([vs])(\d+)', tok)
    if m: return [(m.group(1), int(m.group(2)))]
    m = re.fullmatch(r'([vs])\[(\d+):(\d+)\]', tok)
    if m: return [(m.group(1), i) for i in range(int(m.group(2)), int(m.group(3)) + 1)]
    if tok == 'vcc': return [('s', 106), ('s', 107)]
    if tok == 'exec': return [('s', 126), ('s', 127)]
    if tok == 'm0': return [('s', 124)]
    return []

class Ins:
    def __init__(self, text):
        self.text = text
        t = text.split(';')[0].strip()
        parts = t.split(None, 1)
        self.op = parts[0]
        rest = parts[1] if len(parts) > 1 else ''
        ops = [o.strip() for o in rest.split(',')] if rest else []
        if ops:
            last = ops[-1].split()
            self.mods = last[1:]
            ops[-1] = last[0] if last else ''
        else:
            self.mods = []
        ops = [o for o in ops if not re.search(r'[\[\]]', o) or re.fullmatch(r'-?[vs]\[\d+:\d+\]( .*)?', o)]
        ops = [o.split()[0] if o else o for o in ops]
        self.ops = ops
        op = self.op
        self.kind = ('mfma' if op.startswith('v_mfma') else 'valu' if op.startswith('v_') else
                     'ds' if op.startswith('ds_') else 'vmem' if op.startswith(('buffer_', 'global_')) else
                     'smem' if op.startswith(('s_load', 's_memtime', 's_memrealtime', 's_buffer_load')) else 'salu')
        R = [regs_of(o) for o in ops]
        flat = lambda L: [r for x in L for r in x]
        self.dst, self.src = [], []
        if self.kind == 'vmem':
            if 'store' in op or 'lds' in t.split():
                self.src = flat(R)
                if 'lds' in t.split(): self.src += [('s', 124)]
            else:
                self.dst, self.src = R[0], flat(R[1:])
        elif self.kind == 'ds':
            if 'write' in op: self.src = flat(R)
            else: self.dst, self.src = R[0], flat(R[1:])
        elif op.startswith('v_permlane32_swap') or op.startswith('v_permlane16_swap'):
            self.dst = flat(R); self.src = flat(R)
        elif op.startswith(('v_dot2c', 'v_fmac')):
            self.dst = R[0]; self.src = flat(R)
        elif op.startswith(('s_cmp', 's_bitcmp', 's_cbranch', 's_branch', 's_waitcnt', 's_barrier', 's_nop', 's_sleep', 's_setprio', 's_endpgm', 's_setpc')):
            self.src = flat(R)
        elif op.startswith(('v_add_co', 'v_sub_co', 'v_addc_co')):
            self.dst = R[0] + R[1]; self.src = flat(R[2:])
        else:
            if R:
                self.dst, self.src = R[0], flat(R[1:])
        if op.startswith('v_cndmask') and len(ops) == 3:
            self.src += [('s', 106), ('s', 107)]
        self.wide_store = self.kind == 'vmem' and 'store' in op and ('x4' in op or 'x3' in op)
        self.store_data = R[0] if self.wide_store and op.startswith('buffer_') else []
        self.mfma_c = R[3] if self.kind == 'mfma' and len(R) > 3 else []
        self.mfma_ab = (R[1] + R[2]) if self.kind == 'mfma' else []
        self.passes = 8 if '32x32x16' in op else 4

    def states(self):
        if self.op == 's_nop': return int(self.ops[0], 0) + 1
        return 1

class Asm:
    def __init__(self):
        self.lines = []
        self.n_label = 0

    def __call__(self, text):
        for ln in text.strip().split('\n'):
            ln = ln.strip()
            if not ln: continue
            if ln.startswith(';') or ln.startswith('.'):
                self.lines.append(ln)
            elif ln.endswith(':'):
                self.lines.append(ln)
            else:
                self.lines.append(Ins(ln))

    def label(self, name): self.lines.append(name + ':')
    def newlabel(self, p='L'):
        self.n_label += 1
        return f'{p}_{self.n_label}'

    def required(self, prev, cur):
        need = 0
        pd, cs, cd = set(prev.dst), set(cur.src), set(cur.dst)
        pv = {r for r in pd if r[0] == 'v'}
        ps = {r for r in pd if r[0] == 's'}
        if prev.kind == 'mfma':
            P = prev.passes
            if cur.kind == 'mfma':
                if pv & set(cur.mfma_ab): need = max(need, P + 4)
                if pv & set(cur.mfma_c):
                    if not (cur.mfma_c == prev.dst and cur.passes == P): need = max(need, P + 2)
                elif pv & cd and not cur.mfma_c:
                    need = max(need, P + 2)
            elif cur.kind in ('valu', 'vmem', 'ds'):
                if pv & (cs | cd): need = max(need, P + 4)
            if cur.kind == 'valu' and set(prev.mfma_c) & cd: need = max(need, P - 1)
            if cur.kind in ('ds', 'vmem') and set(prev.mfma_c) & cd: need = max(need, P - 1)
        elif prev.kind == 'valu':
            isdot = prev.op.startswith('v_dot')
            if cur.kind == 'mfma' and pv & cs: need = max(need, 3 if isdot else 2)
            if cur.kind == 'valu':
                if isdot and pv & (cs | cd) and not (cur.op == prev.op and cur.dst == prev.dst): need = max(need, 3)
                if prev.op.split('_e')[0] in TRANS and pv & cs: need = max(need, 1)
                if cur.op.startswith('v_permlane') and pv & cs: need = max(need, 2)
                if cur.op.startswith(('v_readfirstlane', 'v_readlane')) and pv & cs: need = max(need, 1)
                if 'dpp' in cur.text and pv & cs: need = max(need, 2)
                if ps & cs: need = max(need, 2)
                if cur.op.startswith(('v_readlane', 'v_writelane')) and ps & cs: need = max(need, 4)
            if cur.kind in ('vmem', 'ds') and isdot and pv & cs: need = max(need, 3)
            if cur.kind in ('vmem', 'ds') and prev.op.split('_e')[0] in TRANS and pv & cs: need = max(need, 1)
            if cur.kind == 'vmem' and ps & cs: need = max(need, 5)
            if cur.kind in ('salu', 'smem') and ps & cs: need = max(need, 1)
        elif prev.kind == 'salu':
            if ('s', 124) in pd and cur.kind == 'vmem' and ('s', 124) in cs: need = max(need, 1)
        if prev.wide_store and set(prev.store_data) & cd:
            need = max(need, 2)
        return need

    def finalize(self):
        out = []
        hist = []
        pos = 0
        for e in self.lines:
            if isinstance(e, str):
                out.append(e); continue
            need_pos = pos
            for (p, ppos) in hist[-24:]:
                r = self.required(p, e)
                if r: need_pos = max(need_pos, ppos + 1 + r)
            while pos < need_pos:
                n = min(16, need_pos - pos)
                nop = Ins(f's_nop {n-1}')
                out.append(nop); pos += n
            out.append(e)
            hist.append((e, pos + e.states() - 1))
            pos += e.states()
        txt = []
        for e in out:
            if isinstance(e, str): txt.append(e)
            else: txt.append('    ' + e.text)
        return '\n'.join(txt) + '\n'

    def fence(self, n=13):
        self(f's_nop {n-1}')
```

```python
import sys, struct
from asmlib import Asm

NAME = 'gated_mix__linear_kernel_hedgehog__glu_gated_geglu__prompt'
STAMP = '--stamp' in sys.argv

def f2u(x): return struct.unpack('<I', struct.pack('<f', x))[0]

SLOT = lambda i: 16384 * i
A0, A1 = 7, 8
MISC = 9 * 16384
WP, GW, FM = MISC, MISC + 14336, MISC + 15360
XCH = SLOT(6)
LDS_BYTES = 163840
FL_H, FL_KP, FL_KF = 4096, 8192, 20480
WS_H, WS_O, WS_KVP, WS_KVF, WS_ST = 1 << 20, 8 << 20, 10 << 20, 12 << 20, 13 << 20
WS_BYTES = 16 << 20
P = dict(x=4, wqkv=6, wphi=8, wo=10, bx=12, wg=14, wu=16, wd=18, gw=20, out=22, dbg=24, ws=26)
sWS, sA, sB, sXA, sXB = 28, 32, 36, 40, 44
N1, N2, N3 = 48, 56, 64
(sW, sW1K, sR4, sC, sMT, sTYP, sGRP, sTAG, sROT, sROW, sSTEP, sLIM, sXROW, sXC, sRT, sCT,
 sPEND, sT0, sT1, sT2, sT3, sL2E, sCNT, sID) = range(72, 96)
sHI = 96
sRET = 98
sST = 100
srd = lambda b: f's[{b}:{b+3}]'
sp = lambda b: f's[{b}:{b+1}]'
vL16, vROW, vCHK, vOFFW, vOFFX, vTA0, vTA1, vTA2, vINV, vG, vL4 = 1, 2, 3, 4, 5, 6, 7, 8, 9, 10, 11
vT0, vT1, vT2, vT3 = 12, 13, 14, 15
X, ACA, ACB, FR, EXT = 16, 128, 144, 160, 192
vr = lambda b, n: f'v[{b}:{b+n-1}]'

a = Asm()
stamp_idx = [0]
def stamp(name):
    if not STAMP: return
    i = stamp_idx[0]; stamp_idx[0] += 1
    print(f'stamp {i}: {name}', file=sys.stderr)
    a(f'''s_memrealtime {sp(sST)}
    s_waitcnt lgkmcnt(0)
    v_mov_b32 v{vT3}, s{sST}
    s_lshl_b32 s{sST}, s2, 3
    s_add_u32 s{sST}, s{sST}, s{sW}
    s_lshl_b32 s{sST}, s{sST}, 8
    s_add_u32 s{sST}, s{sST}, {WS_ST + 4*i}
    s_mov_b64 exec, 1
    buffer_store_dword v{vT3}, off, {srd(sWS)}, s{sST}
    s_mov_b64 exec, -1''')

def add64(dst, src, off):
    a(f's_add_u32 s{dst}, s{src}, {off}\ns_addc_u32 s{dst+1}, s{src+1}, 0')

def set_stream(n, pa, offa, sza, pb, offb, szb, pitch, step):
    add64(n, pa, offa); add64(n + 2, pb, offb)
    a(f's_sub_u32 s{n+4}, {sza}, {offa}' if not isinstance(offa, int) else f's_mov_b32 s{n+4}, {sza-offa}')
    a(f's_sub_u32 s{n+5}, {szb}, {offb}' if not isinstance(offb, int) else f's_mov_b32 s{n+5}, {szb-offb}')
    a(f's_mov_b32 s{n+6}, {pitch}\ns_mov_b32 s{n+7}, {step}')

def stream_ffn(n, sg):
    a(f's_lshl_b32 s{sT3}, s{sg}, 7')
    set_stream(n, P['wg'], f's{sT3}', 448*3584, P['wu'], f's{sT3}', 448*3584, 3584, 64*3584)
def stream_qkv(n, soa, sob):
    set_stream(n, P['wqkv'], f's{soa}', 448*2688, P['wqkv'], f's{sob}', 448*2688, 2688, 64*2688)
def stream_p2(n):
    a(f's_lshl_b32 s{sT3}, s{sCT}, 7\ns_add_u32 s{sT2}, s{sT3}, {64*896}')
    set_stream(n, P['wd'], f's{sT3}', 1792*896, P['wd'], f's{sT2}', 1792*896, 896, 128*896)
def stream_null(n):
    set_stream(n, P['wd'], 0, 0, P['wd'], 0, 0, 896, 0)

def switch_stream():
    a(f'''s_mov_b64 {sp(sA)}, {sp(N1)}
    s_mov_b32 s{sA+2}, s{N1+4}
    s_mov_b64 {sp(sB)}, {sp(N1+2)}
    s_mov_b32 s{sB+2}, s{N1+5}
    s_mov_b32 s{sSTEP}, s{N1+7}
    s_cmp_eq_u32 s{N1+6}, 2688
    s_cselect_b32 s{sT0}, 96, -1
    v_min_u32 v{vT0}, s{sT0}, v{vCHK}
    v_mad_u32_u24 v{vOFFW}, v{vROW}, s{N1+6}, v{vT0}
    s_mul_i32 s{sROW}, s{sROT}, s{sSTEP}
    s_mul_i32 s{sLIM}, s{sSTEP}, 7
    s_cmp_eq_u32 s{N1+6}, 896
    s_cselect_b32 s{sROW}, 0, s{sROW}
    s_cselect_b32 s{sLIM}, -1, s{sLIM}''')
    for i in range(0, 8, 2):
        a(f's_mov_b64 {sp(N1+i)}, {sp(N2+i)}')
    for i in range(0, 8, 2):
        a(f's_mov_b64 {sp(N2+i)}, {sp(N3+i)}')

class VM:
    def __init__(self): self.ops = []
    def add(self, tag, n=1): self.ops += [tag] * n
    def wait(self, *tags):
        last = max(i for i, t in enumerate(self.ops) if t in tags)
        n = len(self.ops) - 1 - last
        assert n <= 63
        a(f's_waitcnt vmcnt({n})')
        return n

def issue_w(slot, vm=None, tag=None):
    a(f'''s_add_u32 m0, s{sW1K}, {SLOT(slot)}
    buffer_load_dwordx4 v{vOFFW}, {srd(sA)}, s{sROW} offen lds
    s_add_u32 m0, s{sW1K}, {SLOT(slot)+8192}
    buffer_load_dwordx4 v{vOFFW}, {srd(sB)}, s{sROW} offen lds
    s_add_u32 s{sROW}, s{sROW}, s{sSTEP}
    s_cmp_eq_u32 s{sROW}, s{sLIM}
    s_cselect_b32 s{sROW}, 0, s{sROW}''')
    if vm: vm.add(tag, 2)

def issue_x(slot, vm, tag):
    a(f'''s_add_u32 m0, s{sW1K}, {SLOT(slot)}
    buffer_load_dwordx4 v{vOFFX}, {srd(sXA)}, s{sXROW} offen lds
    s_add_u32 m0, s{sW1K}, {SLOT(slot)+8192}
    buffer_load_dwordx4 v{vOFFX}, {srd(sXB)}, s{sXROW} offen lds
    s_add_u32 s{sXROW}, s{sXROW}, 128
    s_cmp_eq_u32 s{sXROW}, 896
    s_cselect_b32 s{sXROW}, 0, s{sXROW}''')
    vm.add(tag, 2)

def ldsaddr(bases, off):
    return f'v{bases[off >> 16]} offset:{off & 0xffff}'

def pipeline(stages, ahead):
    issued = 0; n = len(stages); cnt = []
    tot = 0
    def issue(i):
        nonlocal tot
        for r in stages[i][0]: a(r)
        tot += len(stages[i][0]); cnt.append(tot)
    for i in range(min(ahead, n)): issue(i)
    for i in range(n):
        a(f's_waitcnt lgkmcnt({min(15, tot - cnt[i])})')
        work = stages[i][1]
        for k, wk in enumerate(work):
            a(wk)
            if k == 0 and i + ahead < n: issue(i + ahead)

def mfma(d, A, B, first=False):
    return f'v_mfma_f32_32x32x16_bf16 {vr(d,16)}, {vr(A,4)}, {vr(B,4)}, {"0" if first else vr(d,16)}'

TA = (vTA0, vTA1, vTA2)
def w_reads(slot, s):
    r = []
    for t in range(2):
        for jj in range(2):
            off = SLOT(slot) + t*8192 + s*2048 + jj*512
            r.append(f'ds_read_b64_tr_b16 {vr(FR + 8*s + 4*t + 2*jj, 2)}, {ldsaddr(TA, off)}')
    return r

def set_ta():
    a(f'''s_and_b32 s{sT0}, s{sTYP}, 3
    s_cmp_eq_u32 s{sT0}, 1
    s_cselect_b32 s{sT0}, 64, 56
    s_mul_i32 s{sT0}, s{sT0}, s{sC}
    v_and_b32 v{vT0}, 3, v0
    v_lshlrev_b32 v{vT0}, 3, v{vT0}
    v_bfe_u32 v{vT1}, v0, 4, 1
    v_lshl_add_u32 v{vT0}, v{vT1}, 5, v{vT0}
    v_add_u32 v{vT0}, s{sT0}, v{vT0}
    v_bfe_u32 v{vT1}, v0, 3, 1
    v_lshlrev_b32 v{vT1}, 6, v{vT1}
    v_xor_b32 v{vT0}, v{vT0}, v{vT1}
    v_bfe_u32 v{vT1}, v0, 2, 2
    v_lshl_add_u32 v{vT0}, v{vT1}, 7, v{vT0}
    v_bfe_u32 v{vT1}, v0, 5, 1
    v_lshl_add_u32 v{vTA0}, v{vT1}, 10, v{vT0}
    v_add_u32 v{vTA1}, 0x10000, v{vTA0}
    v_add_u32 v{vTA2}, 0x20000, v{vTA0}''')

def poll(sline, mask):
    L, D = a.newlabel('Lpoll'), a.newlabel('Lpd')
    a(f's_mov_b32 s{sCNT}, 0x8000')
    a.label(L)
    a(f'''buffer_load_dword v{vT3}, v{vL4}, {srd(sWS)}, s{sline} offen sc1
    s_waitcnt vmcnt(0)
    v_cmp_eq_u32 vcc, s{sTAG}, v{vT3}
    s_nop 1
    s_and_b32 s{sT0}, vcc_lo, {hex(mask)}
    s_cmp_eq_u32 s{sT0}, {hex(mask)}
    s_cbranch_scc1 {D}
    s_sleep 1
    s_sub_u32 s{sCNT}, s{sCNT}, 1
    s_cmp_lg_u32 s{sCNT}, 0
    s_cbranch_scc1 {L}''')
    a.label(D)

def flag_store(soff):
    a(f'''v_mov_b32 v{vT3}, s{sTAG}
    s_mov_b64 exec, 1
    buffer_store_dword v{vT3}, off, {srd(sWS)}, s{soff} sc1
    s_mov_b64 exec, -1''')

def pend_flag():
    L = a.newlabel('Lnp')
    a(f's_cmp_eq_u32 s{sPEND}, 0\ns_cbranch_scc1 {L}')
    flag_store(sPEND)
    a(f's_mov_b32 s{sPEND}, 0')
    a.label(L)

def xhalf(op, v, t):
    a(f'''v_mov_b32 v{t}, v{v}
    v_permlane32_swap_b32 v{v}, v{t}
    {op} v{v}, v{v}, v{t}''')

a(f'''s_cmp_ge_u32 s2, 256
s_cbranch_scc1 Lend
s_load_dwordx16 s[4:19], s[0:1], 0
s_load_dwordx8 s[20:27], s[0:1], 64
s_memrealtime {sp(sST)}
v_lshrrev_b32 v{vT0}, 6, v0
v_and_b32 v0, 63, v0
v_readfirstlane_b32 s{sW}, v{vT0}
v_lshlrev_b32 v{vL16}, 4, v0
v_and_b32 v{vL4}, 31, v0
v_lshlrev_b32 v{vL4}, 2, v{vL4}
s_lshl_b32 s{sW1K}, s{sW}, 10
s_and_b32 s{sR4}, s{sW}, 3
s_lshr_b32 s{sC}, s{sW}, 2
s_mov_b32 s{sHI}, 0
s_mov_b32 s{sHI+1}, -1
s_mov_b32 s{sL2E}, {hex(f2u(1.4426950408889634))}
s_mov_b32 s{sPEND}, 0
; row = 8w + (l>>3)
v_lshrrev_b32 v{vROW}, 3, v0
s_lshl_b32 s{sT0}, s{sW}, 3
v_add_u32 v{vROW}, s{sT0}, v{vROW}
v_and_b32 v{vT0}, 7, v0
v_bfe_u32 v{vT1}, v{vROW}, 1, 1
v_lshlrev_b32 v{vT1}, 2, v{vT1}
v_xor_b32 v{vCHK}, v{vT0}, v{vT1}
v_lshlrev_b32 v{vCHK}, 4, v{vCHK}
v_bfe_u32 v{vT1}, v{vROW}, 1, 3
v_xor_b32 v{vT0}, v{vT0}, v{vT1}
v_lshlrev_b32 v{vT0}, 4, v{vT0}
v_mul_u32_u24 v{vOFFX}, 896, v{vROW}
v_add_u32 v{vOFFX}, v{vOFFX}, v{vT0}
s_and_b32 s{sT0}, s2, 7
s_lshr_b32 s{sT1}, s2, 3
s_lshl_b32 s{sRT}, s{sT0}, 2
s_and_b32 s{sT2}, s{sT1}, 3
s_add_u32 s{sRT}, s{sRT}, s{sT2}
s_lshr_b32 s{sCT}, s{sT1}, 2
s_and_b32 s{sMT}, s{sT0}, 1
s_lshl_b32 s{sMT}, s{sMT}, 3
s_lshr_b32 s{sT0}, s{sT0}, 1
s_mov_b32 s{sWS+3}, 0x20000
s_mov_b32 s{sA+3}, 0x20000
s_mov_b32 s{sB+3}, 0x20000
s_mov_b32 s{sXA+3}, 0x20000
s_mov_b32 s{sXB+3}, 0x20000
s_waitcnt lgkmcnt(0)
s_mov_b64 {sp(sWS)}, {sp(P['ws'])}
s_mov_b32 s{sWS+2}, {WS_BYTES}
s_cmp_ge_u32 s{sT1}, 28
s_cbranch_scc1 Lrole_q''')
a(f'''s_mul_i32 s{sT0}, s{sT0}, 28
s_add_u32 s{sT0}, s{sT0}, s{sT1}
s_lshr_b32 s{sID}, s{sT0}, 3
s_and_b32 s{sT0}, s{sT0}, 7
s_add_u32 s{sMT}, s{sMT}, s{sT0}
s_add_u32 s{sT0}, s{sID}, 6''')
stream_ffn(N2, sT0)
a(f's_cmp_lt_u32 s{sID}, 6\ns_cbranch_scc0 Lrole_kv')
stream_ffn(N1, sID)
a(f's_add_u32 s{sT0}, s{sID}, 20')
stream_ffn(N3, sT0)
a(f'''s_mov_b32 s{sTYP}, 0x15
s_mul_i32 s{sGRP}, s{sID}, 0x10101
s_add_u32 s{sGRP}, s{sGRP}, 0x140600
s_mov_b32 s{sXB+2}, 0
s_mov_b64 {sp(sXB)}, {sp(P['wphi'])}
s_branch Lrole_done''')
a.label('Lrole_kv')
a(f'''s_sub_u32 s{sT0}, s{sID}, 5
s_cmp_eq_u32 s{sID}, 12
s_cselect_b32 s{sT0}, 0, s{sT0}
s_cmp_eq_u32 s{sID}, 13
s_cselect_b32 s{sT0}, 7, s{sT0}
s_mul_i32 s{sGRP}, s{sID}, 0x10100
s_add_u32 s{sGRP}, s{sGRP}, 0x0e0600
s_add_u32 s{sGRP}, s{sGRP}, s{sT0}
s_mul_i32 s{sT1}, s{sT0}, 3136''')
add64(sXB, P['wphi'], f's{sT1}')
a(f'''s_mov_b32 s{sXB+2}, 3136
s_mul_i32 s{sT0}, s{sT0}, 112
s_add_u32 s{sT1}, s{sT0}, 1792
s_add_u32 s{sT0}, s{sT0}, 896''')
stream_qkv(N1, sT0, sT1)
a(f's_cmp_lt_u32 s{sID}, 12\ns_cbranch_scc0 Lrole_r2')
stream_p2(N3)
a(f's_mov_b32 s{sTYP}, 0x06\ns_branch Lrole_done')
a.label('Lrole_r2')
a(f's_add_u32 s{sT0}, s{sID}, 14')
stream_ffn(N3, sT0)
a(f's_mov_b32 s{sTYP}, 0x16\ns_branch Lrole_done')
a.label('Lrole_q')
a(f'''s_and_b32 s{sID}, s{sT0}, 1
s_lshr_b32 s{sT0}, s{sT0}, 1
s_lshl_b32 s{sT0}, s{sT0}, 2
s_add_u32 s{sMT}, s{sMT}, s{sT0}
s_add_u32 s{sMT}, s{sMT}, s{sT2}
s_mul_i32 s{sT1}, s{sID}, 12544''')
add64(sXB, P['wphi'], f's{sT1}')
a(f'''s_mov_b32 s{sXB+2}, 12544
s_mul_i32 s{sT0}, s{sID}, 448
s_add_u32 s{sT1}, s{sT0}, 112''')
stream_qkv(N1, sT0, sT1)
a(f's_add_u32 s{sT0}, s{sT0}, 224\ns_add_u32 s{sT1}, s{sT1}, 224')
stream_qkv(N2, sT0, sT1)
stream_null(N3)
a(f's_mov_b32 s{sTYP}, 0x0f\ns_mov_b32 s{sGRP}, 0')
a.label('Lrole_done')
a(f'''s_mul_i32 s{sT0}, s{sID}, 3
s_add_u32 s{sT0}, s{sT0}, s{sMT}
s_mul_i32 s{sT1}, s{sT0}, 37
s_lshr_b32 s{sT1}, s{sT1}, 8
s_mul_i32 s{sT1}, s{sT1}, 7
s_sub_u32 s{sROT}, s{sT0}, s{sT1}
s_lshl_b32 s{sXROW}, s{sROT}, 7
s_mov_b32 s{sXC}, s{sXROW}''')
vm = VM()
a(f'''s_mov_b64 {sp(sXA)}, {sp(P['gw'])}
s_mov_b32 s{sXA+2}, 896
s_lshl_b32 s{sT0}, s{sW}, 11
s_cmp_eq_u32 s{sW}, 7
s_cbranch_scc1 Lmisc7
s_add_u32 m0, s{sT0}, {WP}
s_nop 0
buffer_load_dwordx4 v{vL16}, {srd(sXB)}, s{sT0} offen lds
buffer_load_dwordx4 v{vL16}, {srd(sXB)}, s{sT0} offen offset:1024 lds
s_branch Lmisc_done''')
a.label('Lmisc7')
a(f'''s_mov_b32 m0, {GW}
s_nop 0
buffer_load_dwordx4 v{vL16}, {srd(sXA)}, 0 offen lds
buffer_load_dwordx4 v{vL16}, {srd(sXA)}, 0 offen offset:1024 lds''')
a.label('Lmisc_done')
vm.add('misc', 2)
a(f's_mul_i32 s{sT0}, s{sMT}, {128*896}')
add64(sXA, P['x'], f's{sT0}')
a(f's_sub_u32 s{sXA+2}, {2048*896}, s{sT0}\ns_add_u32 s{sT0}, s{sT0}, {64*896}')
add64(sXB, P['x'], f's{sT0}')
a(f's_sub_u32 s{sXB+2}, {2048*896}, s{sT0}')
issue_x(A0, vm, 'x0')
switch_stream()
stream_p2(N3)
issue_w(A1, vm, 'w0')
XS = [A0, 4, 5, 1, 3, A1, 6]
WSL = [A1, 6, 0, 2, A0, 4, 5]
for j in (1, 2, 3):
    issue_x(XS[j], vm, f'x{j}'); issue_w(WSL[j], vm, f'w{j}')
issue_x(XS[4], vm, 'x4')
a(f'''s_or_b32 s{sT0}, s2, s{sW}
s_cmp_lg_u32 s{sT0}, 0
s_cbranch_scc1 Lnotag
s_or_b32 s{sT0}, s{sST}, 1
v_mov_b32 v{vT0}, s{sT0}
v_mov_b32 v{vT1}, 0
s_mov_b64 exec, 1
global_store_dword v{vT1}, v{vT0}, {sp(P['dbg'])} sc1
s_mov_b64 exec, -1''')
a.label('Lnotag')
set_ta()
vXA, vGA, vGF, vGACC, vTAG = EXT, EXT + 8, EXT + 16, EXT + 10, EXT + 14
a(f'''v_and_b32 v{vT0}, 31, v0
s_lshl_b32 s{sT0}, s{sR4}, 5
v_add_u32 v{vT0}, s{sT0}, v{vT0}
v_bfe_u32 v{vT1}, v{vT0}, 1, 3
v_lshrrev_b32 v{vT2}, 5, v0
v_xor_b32 v{vT1}, v{vT1}, v{vT2}
v_lshlrev_b32 v{vT1}, 4, v{vT1}
v_lshl_add_u32 v{vXA}, v{vT0}, 7, v{vT1}
v_xor_b32 v{vXA+1}, 32, v{vXA}
v_xor_b32 v{vXA+2}, 64, v{vXA}
v_xor_b32 v{vXA+3}, 0x60, v{vXA}
v_lshlrev_b32 v{vGA}, 4, v{vT2}
v_add_u32 v{vGA}, {GW}, v{vGA}
v_mov_b32 v{vGACC}, 0
v_mov_b32 v{vGACC+1}, 0
v_mov_b32 v{vGACC+2}, 0
v_mov_b32 v{vGACC+3}, 0''')
stamp('prologue done')
for j in range(7):
    for s in range(4):
        a(f'v_add_u32 v{vXA+4+s}, {SLOT(XS[j])}, v{vXA+s}')
    a(f'''v_add_u32 v{vGA+1}, s{sXC}, v{vGA}
    s_add_u32 s{sXC}, s{sXC}, 128
    s_cmp_eq_u32 s{sXC}, 896
    s_cselect_b32 s{sXC}, 0, s{sXC}''')
    vm.wait(f'x{j}', f'w{j}', 'misc')
    a('s_barrier')
    if j == 1: issue_w(WSL[4], vm, 'w4'); issue_x(XS[5], vm, 'x5')
    if j == 2: issue_w(WSL[5], vm, 'w5'); issue_x(XS[6], vm, 'x6')
    if j == 3:
        a(f'v_mov_b32 v{vT1}, 0\nglobal_load_dword v{vTAG}, v{vT1}, {sp(P["dbg"])} sc1'); vm.add('tag')
        issue_w(WSL[6], vm, 'w6'); switch_stream(); issue_w(0, vm, 'n0')
    if j == 4: issue_w(1, vm, 'n1'); issue_w(2, vm, 'n2')
    if j == 5: issue_w(3, vm, 'n3')
    if j == 6: issue_w(4, vm, 'n4')
    stages = []
    for s in range(4):
        xr = X + 16*j + 4*s
        reads = [f'ds_read_b128 {vr(xr,4)}, v{vXA+4+s}'] + w_reads(WSL[j], s) + \
                [f'ds_read_b128 {vr(vGF+4*s,4)}, v{vGA+1} offset:{32*s}']
        first = (j == 0 and s == 0)
        work = [mfma(ACA, FR+8*s, xr, first), mfma(ACB, FR+8*s+4, xr, first)]
        work += [f'v_dot2c_f32_bf16 v{vGACC+i}, v{xr+i}, v{vGF+4*s+i}' for i in range(4)]
        stages.append((reads, work))
    pipeline(stages, 2)
    if j == 0: stamp('first tick done')
a('s_barrier')
issue_w(5, vm, 'n5')
a(f'''v_add_f32 v{vGACC}, v{vGACC}, v{vGACC+1}
v_add_f32 v{vGACC+2}, v{vGACC+2}, v{vGACC+3}
v_add_f32 v{vGACC}, v{vGACC}, v{vGACC+2}''')
xhalf('v_add_f32', vGACC, vT0)
a(f'''v_mul_f32 v{vT0}, s{sL2E}, v{vGACC}
v_exp_f32 v{vINV}, v{vT0}
v_exp_f32 v{vG}, -v{vT0}
v_add_f32 v{vINV}, 1.0, v{vINV}
v_add_f32 v{vG}, 1.0, v{vG}
v_min_f32 v{vINV}, {hex(f2u(1e30))}, v{vINV}
v_rcp_f32 v{vG}, v{vG}
v_readfirstlane_b32 s{sTAG}, v{vTAG}
s_mov_b32 s{sCNT}, 0x8000''')
a.label('Ltagchk')
a(f'''s_cmp_lg_u32 s{sTAG}, 0
s_cbranch_scc1 Ltagok
v_mov_b32 v{vT1}, 0
global_load_dword v{vTAG}, v{vT1}, {sp(P["dbg"])} sc1
s_waitcnt vmcnt(0)
v_readfirstlane_b32 s{sTAG}, v{vTAG}
s_sub_u32 s{sCNT}, s{sCNT}, 1
s_cmp_lg_u32 s{sCNT}, 0
s_cbranch_scc1 Ltagchk''')
a.label('Ltagok')
stamp('first pass done')
a.label('Lepi')
a.fence()
a(f'''s_and_b32 s{sT0}, s{sTYP}, 3
s_cmp_eq_u32 s{sT0}, 2
s_cbranch_scc1 Lepi_kv
s_cmp_eq_u32 s{sT0}, 3
s_cbranch_scc1 Lepi_q''')
C0 = -2.0 * 0.7978845608028654 * 1.4426950408889634
C1 = C0 * 0.044715
a(f'''v_mov_b32 v{vT0}, {hex(f2u(C1))}
s_and_b32 s{sT0}, s{sGRP}, 0xff
s_lshl_b32 s{sT1}, s{sMT}, 2
s_add_u32 s{sT1}, s{sT1}, s{sR4}
s_mul_i32 s{sT1}, s{sT1}, 112
s_lshl_b32 s{sT2}, s{sT0}, 2
s_add_u32 s{sT1}, s{sT1}, s{sT2}
s_lshl_b32 s{sT2}, s{sC}, 1
s_add_u32 s{sT1}, s{sT1}, s{sT2}
s_lshl_b32 s{sT1}, s{sT1}, 10
s_add_u32 s{sT1}, s{sT1}, {WS_H}
s_lshl_b32 s{sT2}, s{sMT}, 8
s_lshl_b32 s{sT0}, s{sT0}, 2
s_add_u32 s{sT0}, s{sT0}, s{sT2}
s_add_u32 s{sT0}, s{sT0}, {FL_H}
s_cmp_eq_u32 s{sW}, 0
s_cselect_b32 s{sPEND}, s{sT0}, 0''')
for half in range(2):
    R = range(8*half, 8*half + 8)
    T = lambda r: FR + r
    for r in R: a(f'v_mul_f32 v{T(r)}, v{ACA+r}, v{ACA+r}')
    for r in R: a(f'v_fmaak_f32 v{T(r)}, v{vT0}, v{T(r)}, {hex(f2u(C0))}')
    for r in R: a(f'v_mul_f32 v{T(r)}, v{T(r)}, v{ACA+r}')
    for r in R: a(f'v_exp_f32 v{T(r)}, v{T(r)}')
    for r in R: a(f'v_mul_f32 v{ACA+r}, v{ACA+r}, v{ACB+r}')
    for r in R: a(f'v_fma_f32 v{T(r)}, v{T(r)}, v{vINV}, v{vINV}')
    for r in R: a(f'v_rcp_f32 v{T(r)}, v{T(r)}')
    for r in R: a(f'v_mul_f32 v{ACA+r}, v{ACA+r}, v{T(r)}')
    for i in range(4):
        a(f'v_cvt_pk_bf16_f32 v{FR+16+4*half+i}, v{ACA+8*half+2*i}, v{ACA+8*half+2*i+1}')
    a(f'buffer_store_dwordx4 {vr(FR+16+4*half,4)}, v{vL16}, {srd(sWS)}, s{sT1} offen offset:{1024*half} sc1')
stamp('ffn epilogue done')
a.label('Lnext')
a(f'''s_lshr_b32 s{sTYP}, s{sTYP}, 2
s_lshr_b32 s{sGRP}, s{sGRP}, 8
s_cmp_eq_u32 s{sTYP}, 0
s_cbranch_scc1 Lp2''')
set_ta()
for j in range(7):
    a(f's_waitcnt vmcnt({6 if j == 3 else 10})')
    a('s_barrier')
    issue_w((j + 6) % 7)
    if j == 0: switch_stream()
    if j == 3: pend_flag()
    stages = []
    for s in range(4):
        xr = X + 16*j + 4*s
        first = (j == 0 and s == 0)
        stages.append((w_reads(j, s), [mfma(ACA, FR+8*s, xr, first), mfma(ACB, FR+8*s+4, xr, first)]))
    pipeline(stages, 3)
stamp('mid pass done')
a('s_branch Lepi')

KB, WF, EM, PP = FR + 16, FR + 24, FR, ACA
S0 = EXT - 0
a.label('Lfm')
sx = [vT0, vT1, vT3]
for s in range(2):
    for jj in range(2):
        a(f'ds_read_b64_tr_b16 {vr(WF+4*s+2*jj,2)}, v{vT2} offset:{(16*s+8*jj)*56}')
a(f'''v_cndmask_b32 v{KB+6}, v{KB+6}, 0, {sp(sHI)}
v_cndmask_b32 v{KB+7}, v{KB+7}, 0, {sp(sHI)}
s_waitcnt lgkmcnt(0)''')
a(mfma(PP, WF, KB, True)); a(mfma(PP, WF+4, KB+4))
for r in range(12, 16): a(f'v_cndmask_b32 v{PP+r}, v{PP+r}, v{PP}, {sp(sHI)}')
MX, MN, BPP, BMP, TT = KB, KB+1, KB+2, KB+3, KB+4
for (op, d) in (('max', MX), ('min', MN)):
    a(f'v_{op}3_f32 v{d}, v{PP}, v{PP+1}, v{PP+2}')
    for r in range(3, 15, 2): a(f'v_{op}3_f32 v{d}, v{d}, v{PP+r}, v{PP+r+1}')
    a(f'v_{op}_f32 v{d}, v{d}, v{PP+15}')
xhalf('v_max_f32', MX, TT); xhalf('v_min_f32', MN, TT+1)
a(f'''v_mul_f32 v{MX}, s{sL2E}, v{MX}
v_mul_f32 v{MN}, s{sL2E}, v{MN}
v_mov_b32 v{TT}, 0x7f800000
v_mov_b32 v{TT+1}, 0xff800000
v_cndmask_b32 v{BPP}, v{MX}, v{TT}, {sp(sHI)}
v_cndmask_b32 v{BMP}, v{MN}, v{TT+1}, {sp(sHI)}''')
for r in range(16): a(f'v_fma_f32 v{EM+r}, -v{PP+r}, s{sL2E}, v{BMP if r >= 12 else MN}')
for r in range(16): a(f'v_fma_f32 v{PP+r}, v{PP+r}, s{sL2E}, -v{BPP if r >= 12 else MX}')
for r in range(16): a(f'v_exp_f32 v{EM+r}, v{EM+r}')
for r in range(16): a(f'v_exp_f32 v{PP+r}, v{PP+r}')
SP, SM = vT0, vT1
for (base, d, t) in ((EM, SM, MX), (PP, SP, MN)):
    a(f'v_add_f32 v{d}, v{base}, v{base+1}\nv_add_f32 v{t}, v{base+2}, v{base+3}')
    for r in range(4, 16, 2): a(f'v_add_f32 v{d}, v{d}, v{base+r}\nv_add_f32 v{t}, v{t}, v{base+r+1}')
    a(f'v_add_f32 v{d}, v{d}, v{t}')
xhalf('v_add_f32', SM, TT); xhalf('v_add_f32', SP, TT+1)
a(f'v_rcp_f32 v{SM}, v{SM}\nv_rcp_f32 v{SP}, v{SP}')
for r in range(16): a(f'v_mul_f32 v{EM+r}, v{EM+r}, v{SM}')
for r in range(16): a(f'v_mul_f32 v{PP+r}, v{PP+r}, v{SP}')
for i in range(8): a(f'v_cvt_pk_bf16_f32 v{FR+16+i}, v{PP+2*i}, v{PP+2*i+1}')
for i in range(8): a(f'v_cvt_pk_bf16_f32 v{FR+24+i}, v{EM+2*i}, v{EM+2*i+1}')
a(f's_nop 1\ns_setpc_b64 {sp(sRET)}')

def wphi_addr(shead):
    a(f'''s_mul_i32 s{sT0}, s{shead}, 1568
    s_add_u32 s{sT0}, s{sT0}, {WP}
    v_bfe_u32 v{vT0}, v0, 2, 2
    v_lshrrev_b32 v{vT1}, 5, v0
    v_lshl_add_u32 v{vT0}, v{vT1}, 2, v{vT0}
    v_mul_u32_u24 v{vT2}, 56, v{vT0}
    v_and_b32 v{vT0}, 3, v0
    v_lshl_add_u32 v{vT2}, v{vT0}, 3, v{vT2}
    v_bfe_u32 v{vT0}, v0, 4, 1
    v_lshl_add_u32 v{vT2}, v{vT0}, 5, v{vT2}
    v_add_u32 v{vT2}, s{sT0}, v{vT2}''')

def pack(dst, src):
    for i in range(8): a(f'v_cvt_pk_bf16_f32 v{dst+i}, v{src+2*i}, v{src+2*i+1}')

a.label('Lepi_kv')
wphi_addr(sC)
pack(KB, ACA)
a(f's_call_b64 {sp(sRET)}, Lfm')
a.fence(3)
vWA = EXT
VB = EXT + 8
a(f'''v_and_b32 v{vT0}, 31, v0
s_lshl_b32 s{sT0}, s{sR4}, 5
v_add_u32 v{vT0}, s{sT0}, v{vT0}
v_bfe_u32 v{vT1}, v{vT0}, 1, 3
v_lshrrev_b32 v{vT2}, 5, v0
v_xor_b32 v{vT1}, v{vT1}, v{vT2}
v_lshlrev_b32 v{vT1}, 3, v{vT1}
v_lshl_add_u32 v{vT0}, v{vT0}, 6, v{vT1}
s_mul_i32 s{sT0}, s{sC}, 24576
s_add_u32 s{sT0}, s{sT0}, {XCH}
v_add_u32 v{vWA}, s{sT0}, v{vT0}
v_xor_b32 v{vWA+1}, 16, v{vWA}
v_xor_b32 v{vWA+2}, 32, v{vWA}
v_xor_b32 v{vWA+3}, 48, v{vWA}''')
pack(VB, ACB)
a(f'''v_mov_b32 v{vT0}, 0x3f80
v_cndmask_b32 v{VB+6}, v{VB+6}, v{vT0}, {sp(sHI)}
v_cndmask_b32 v{VB+7}, v{VB+7}, 0, {sp(sHI)}''')
for g in range(4):
    a(f'ds_write_b64 v{vWA+g}, {vr(FR+16+2*g,2)} offset:8192')
    a(f'ds_write_b64 v{vWA+g}, {vr(FR+24+2*g,2)} offset:16384')
    a(f'ds_write_b64 v{vWA+g}, {vr(VB+2*g,2)}')
a(f'''s_waitcnt lgkmcnt(0)
s_barrier
s_cmp_ge_u32 s{sW}, 4
s_cbranch_scc1 Lnext''')
vRB, vRA = EXT, EXT + 2
a(f'''v_bfe_u32 v{vT0}, v0, 2, 2
v_lshrrev_b32 v{vT1}, 5, v0
v_lshl_add_u32 v{vT2}, v{vT1}, 3, v{vT0}
v_lshlrev_b32 v{vT2}, 6, v{vT2}
v_lshrrev_b32 v{vT0}, 1, v{vT0}
v_lshl_add_u32 v{vT0}, v{vT1}, 2, v{vT0}
v_and_b32 v{vT1}, 3, v0
v_bfe_u32 v{vT3}, v0, 4, 1
v_lshl_add_u32 v{vT1}, v{vT3}, 2, v{vT1}
v_xor_b32 v{vT0}, v{vT0}, v{vT1}
v_lshl_add_u32 v{vT2}, v{vT0}, 3, v{vT2}
s_lshr_b32 s{sT1}, s{sW}, 1
s_mul_i32 s{sT0}, s{sT1}, 24576
s_add_u32 s{sT0}, s{sT0}, {XCH}
v_add_u32 v{vRB}, s{sT0}, v{vT2}
v_xor_b32 v{vRB+1}, 16, v{vRB}
v_add_u32 v{vRB+1}, 0x100, v{vRB+1}
s_and_b32 s{sT2}, s{sW}, 1
s_lshl_b32 s{sT0}, s{sT2}, 13
s_add_u32 s{sT0}, s{sT0}, 8192
v_add_u32 v{vRA}, s{sT0}, v{vRB}
v_add_u32 v{vRA+1}, s{sT0}, v{vRB+1}''')
stages = []
for s in range(8):
    f = FR + 8 * (s & 3)
    reads = [f'ds_read_b64_tr_b16 {vr(f+2*jj,2)}, v{vRA+jj} offset:{1024*s}' for jj in range(2)] + \
            [f'ds_read_b64_tr_b16 {vr(f+4+2*jj,2)}, v{vRB+jj} offset:{1024*s}' for jj in range(2)]
    stages.append((reads, [mfma(ACA, f, f+4, s == 0)]))
pipeline(stages, 3)
a(f'''s_and_b32 s{sT0}, s{sGRP}, 0xff
s_lshl_b32 s{sT0}, s{sT0}, 2
s_add_u32 s{sT0}, s{sT0}, s{sW}
s_lshl_b32 s{sT1}, s{sT0}, 16
s_lshl_b32 s{sT2}, s{sMT}, 10
s_add_u32 s{sT1}, s{sT1}, s{sT2}
s_add_u32 s{sT1}, s{sT1}, {WS_KVP}
s_lshl_b32 s{sT0}, s{sT0}, 8
s_lshl_b32 s{sT2}, s{sMT}, 2
s_add_u32 s{sT0}, s{sT0}, s{sT2}
s_add_u32 s{sPEND}, s{sT0}, {FL_KP}''')
for q in range(4):
    a(f'buffer_store_dwordx4 {vr(ACA+4*q,4)}, v{vL16}, {srd(sWS)}, s{sT1} offen sc1')
    if q < 3: a(f's_add_u32 s{sT1}, s{sT1}, 16384')
stamp('kv epilogue done')
a.fence(3)
a('s_branch Lnext')

def q_maps(pi):
    for t in range(2):
        a(f's_add_u32 s{sT1}, s{sC}, {4*pi + 2*t}')
        wphi_addr(sT1)
        pack(KB, ACB if t else ACA)
        a(f's_call_b64 {sp(sRET)}, Lfm')
        a.fence(3)
        for i in range(16): a(f'v_mov_b32 v{EXT+16*(2*pi+t)+i}, v{FR+16+i}')
a.label('Lepi_q')
a(f's_cmp_eq_u32 s{sTYP}, 3\ns_cbranch_scc1 Lq_tail')
q_maps(0)
stamp('q epilogue0 done')
a('s_branch Lnext')
a.label('Lq_tail')
a(f'''s_cmp_ge_u32 s{sW}, 4
s_cbranch_scc1 Lq_nored
s_lshl_b32 s{sT1}, s{sRT}, 8
s_add_u32 s{sT1}, s{sT1}, {FL_KP}''')
poll(sT1, 0xffff)
stamp('q kvp flags seen')
a(f'''s_lshl_b32 s{sT1}, s{sRT}, 16
s_lshl_b32 s{sT2}, s{sW}, 14
s_add_u32 s{sT1}, s{sT1}, s{sT2}
s_add_u32 s{sT1}, s{sT1}, {WS_KVP}''')
for m in range(16):
    a(f'buffer_load_dwordx4 {vr(X+4*m,4)}, v{vL16}, {srd(sWS)}, s{sT1} offen offset:{1024*(m&3)} sc1')
    if m & 3 == 3 and m < 15: a(f's_add_u32 s{sT1}, s{sT1}, 4096')
for m in range(1, 16):
    a(f's_waitcnt vmcnt({15-m})')
    for i in range(4): a(f'v_add_f32 v{X+i}, v{X+i}, v{X+4*m+i}')
a(f'''v_cvt_pk_bf16_f32 v{X+4}, v{X}, v{X+1}
v_cvt_pk_bf16_f32 v{X+5}, v{X+2}, v{X+3}
s_lshl_b32 s{sT1}, s{sRT}, 11
s_lshr_b32 s{sT2}, s{sW}, 1
s_lshl_b32 s{sT2}, s{sT2}, 10
s_add_u32 s{sT1}, s{sT1}, s{sT2}
s_and_b32 s{sT2}, s{sW}, 1
s_lshl_b32 s{sT2}, s{sT2}, 3
s_add_u32 s{sT1}, s{sT1}, s{sT2}
s_add_u32 s{sT1}, s{sT1}, {WS_KVF}
buffer_store_dwordx2 {vr(X+4,2)}, v{vL16}, {srd(sWS)}, s{sT1} offen sc1
s_waitcnt vmcnt(0)''')
a.label('Lq_nored')
a(f'''s_waitcnt vmcnt(0)
s_barrier
s_cmp_lg_u32 s{sW}, 0
s_cbranch_scc1 Lq_nofl
s_lshr_b32 s{sT1}, s{sRT}, 4
s_lshl_b32 s{sT1}, s{sT1}, 8
s_and_b32 s{sT2}, s{sRT}, 15
s_lshl_b32 s{sT2}, s{sT2}, 2
s_add_u32 s{sT1}, s{sT1}, s{sT2}
s_add_u32 s{sT1}, s{sT1}, {FL_KF}''')
flag_store(sT1)
a.label('Lq_nofl')
stamp('q reduce done')
q_maps(1)
stamp('q epilogue1 done')
a(f's_lshl_b32 s{sT1}, s{sID}, 8\ns_add_u32 s{sT1}, s{sT1}, {FL_KF}')
poll(sT1, 0xffff)
stamp('q kvf flags seen')
a(f'''s_lshl_b32 s{sT1}, s{sID}, 15
s_lshl_b32 s{sT2}, s{sW}, 12
s_add_u32 s{sT1}, s{sT1}, s{sT2}
s_add_u32 s{sT1}, s{sT1}, {WS_KVF}
s_mov_b32 m0, s{sT2}
s_nop 0''')
for i in range(4):
    a(f'buffer_load_dwordx4 v{vL16}, {srd(sWS)}, s{sT1} offen offset:{1024*i} sc1 lds')
a(f'''s_lshl_b32 s{sT0}, s{sC}, 12
v_add_u32 v{vT2}, s{sT0}, v{vL16}
s_lshl_b32 s{sT1}, s{sMT}, 2
s_add_u32 s{sT1}, s{sT1}, s{sR4}
s_lshl_b32 s{sT1}, s{sT1}, 5
s_lshl_b32 s{sT0}, s{sID}, 4
s_add_u32 s{sT1}, s{sT1}, s{sT0}
s_lshl_b32 s{sT0}, s{sC}, 1
s_add_u32 s{sT1}, s{sT1}, s{sT0}
s_lshl_b32 s{sT1}, s{sT1}, 10
s_add_u32 s{sT1}, s{sT1}, {WS_O}
s_waitcnt vmcnt(0)
s_barrier''')
for i in range(4):
    for k in range(4):
        a(f'ds_read_b128 {vr(X+16*i+4*k,4)}, v{vT2} offset:{8192*i + 1024*k}')
    if i == 2: a('s_waitcnt lgkmcnt(4)')
a('s_waitcnt lgkmcnt(0)')
OA = [ACA, ACB, FR, FR+16]
for i in range(4):
    for k in range(4): a(mfma(OA[i], X+16*i+4*k, EXT+16*i+4*k, k == 0))
for i in range(4):
    o = OA[i]; pk = X + 64 + 8*i
    a(f'''v_mov_b32 v{vT0}, v{o+12}
    v_mov_b32 v{vT1}, v{o+12}
    v_permlane32_swap_b32 v{vT0}, v{vT1}
    v_add_f32 v{vT1}, {hex(f2u(1e-6))}, v{vT1}
    v_rcp_f32 v{vT1}, v{vT1}
    v_mul_f32 v{vT1}, v{vT1}, v{vG}''')
    for r in range(16): a(f'v_mul_f32 v{o+r}, v{o+r}, v{vT1}')
    pack(pk, o)
    a(f'''v_cndmask_b32 v{pk+6}, v{pk+6}, 0, {sp(sHI)}
    v_cndmask_b32 v{pk+7}, v{pk+7}, 0, {sp(sHI)}
    buffer_store_dwordx4 {vr(pk,4)}, v{vL16}, {srd(sWS)}, s{sT1} offen sc1
    buffer_store_dwordx4 {vr(pk+4,4)}, v{vL16}, {srd(sWS)}, s{sT1} offen offset:1024 sc1''')
    if i < 3: a(f's_add_u32 s{sT1}, s{sT1}, 4096')
a(f'''s_waitcnt vmcnt(0)
s_barrier
s_cmp_lg_u32 s{sW}, 0
s_cbranch_scc1 Lq_end
s_lshl_b32 s{sT1}, s{sMT}, 8
s_lshl_b32 s{sT2}, s{sID}, 2
s_add_u32 s{sT1}, s{sT1}, s{sT2}
s_add_u32 s{sT1}, s{sT1}, {FL_H + 112}''')
flag_store(sT1)
a.label('Lq_end')
stamp('q done')
a('s_endpgm')

a.label('Lp2')
sFL, sHO, sOO = sXC, sXROW, sGRP
OF = EXT
PB = [EXT + 32 + i for i in range(6)]
OB = [EXT + 40 + i for i in range(6)]
a(f'''s_lshr_b32 s{sT0}, s{sRT}, 1
s_lshl_b32 s{sFL}, s{sT0}, 8
s_add_u32 s{sFL}, s{sFL}, {FL_H}
s_lshl_b32 s{sT0}, s{sRT}, 1
s_add_u32 s{sT0}, s{sT0}, s{sC}
s_mul_i32 s{sHO}, s{sT0}, 112
s_add_u32 s{sHO}, s{sHO}, s{sR4}
s_lshl_b32 s{sHO}, s{sHO}, 10
s_add_u32 s{sHO}, s{sHO}, {WS_H}
s_lshl_b32 s{sOO}, s{sT0}, 5
s_lshl_b32 s{sT1}, s{sR4}, 1
s_add_u32 s{sOO}, s{sOO}, s{sT1}
s_lshl_b32 s{sOO}, s{sOO}, 10
s_add_u32 s{sOO}, s{sOO}, {WS_O}
v_and_b32 v{vT0}, 3, v0
v_lshlrev_b32 v{vT0}, 3, v{vT0}
v_bfe_u32 v{vT1}, v0, 4, 1
v_lshl_add_u32 v{vT0}, v{vT1}, 5, v{vT0}
v_bfe_u32 v{vT1}, v0, 3, 1
v_lshl_add_u32 v{vT0}, v{vT1}, 6, v{vT0}
v_bfe_u32 v{vT1}, v0, 2, 2
v_lshl_add_u32 v{vT0}, v{vT1}, 7, v{vT0}
v_bfe_u32 v{vT1}, v0, 5, 1
v_lshl_add_u32 v{vT0}, v{vT1}, 9, v{vT0}
s_lshl_b32 s{sT0}, s{sR4}, 11
s_mul_i32 s{sT1}, s{sR4}, {28*128}
v_add_u32 v{PB[0]}, s{sT0}, v{vT0}
v_add_u32 v{OB[0]}, s{sT1}, v{vT0}''')
for B in (PB, OB):
    a(f'''v_xor_b32 v{B[3]}, 64, v{B[0]}
    v_add_u32 v{B[1]}, 0x10000, v{B[0]}
    v_add_u32 v{B[4]}, 0x10000, v{B[3]}
    v_add_u32 v{B[2]}, 0x20000, v{B[0]}
    v_add_u32 v{B[5]}, 0x20000, v{B[3]}''')
a(f's_lshl_b32 s{sT3}, s{sCT}, 7\ns_add_u32 s{sT2}, s{sT3}, {64*896}')
set_stream(N1, P['wo'], f's{sT3}', 448*896, P['wo'], f's{sT2}', 448*896, 896, 112*896)
vm = VM()
for c in range(6): vm.add(f'c{c}', 2)
def h_loads(g0, g1):
    for g in range(g0, g1):
        a(f'buffer_load_dwordx4 {vr(X+4*g,4)}, v{vL16}, {srd(sWS)}, s{sHO} offen sc1')
        a(f's_add_u32 s{sHO}, s{sHO}, 4096')
        vm.add(f'h{g}')
a('s_waitcnt vmcnt(0)\ns_barrier')
pend_flag()
poll(sFL, 0x000fffff)
stamp('p2 flags AB seen')
h_loads(0, 20)
for t in range(18):
    if t == 6:
        poll(sFL, 0x0fffffff); stamp('p2 flags C seen'); h_loads(20, 28)
    if t == 12:
        poll(sFL, 0x3fffffff); stamp('p2 flags O seen')
        for u in range(4):
            for k in range(2):
                a(f'buffer_load_dwordx4 {vr(OF+8*u+4*k,4)}, v{vL16}, {srd(sWS)}, s{sOO} offen offset:{1024*k} sc1')
                vm.add(f'o{u}')
            if u < 3: a(f's_add_u32 s{sOO}, s{sOO}, 8192')
    if t < 14: vm.wait(f'c{t}', f'h{2*t}', f'h{2*t+1}')
    else: vm.wait(f'c{t}', f'o{t-14}')
    a('s_barrier')
    if t + 6 == 14: switch_stream()
    if t + 6 < 18: issue_w((t + 6) % 7, vm, f'c{t+6}')
    stages = []
    sl = SLOT(t % 7)
    for k in range(2):
        B = PB if t < 14 else OB
        off0 = sl + (8192*k if t < 14 else 2048*k)
        reads = []
        for ct in range(2):
            for jj in range(2):
                reads.append(f'ds_read_b64_tr_b16 {vr(FR+8*k+4*ct+2*jj,2)}, {ldsaddr(B[3*ct:3*ct+3], off0 + 1024*jj)}')
        b = X + 4*(2*t+k) if t < 14 else OF + 8*(t-14) + 4*k
        first = (t == 0 and k == 0)
        stages.append((reads, [mfma(ACA, FR+8*k, b, first), mfma(ACB, FR+8*k+4, b, first)]))
    pipeline(stages, 2)
stamp('p2 mfma done')
QS = 1056
a(f'''s_barrier
s_mul_i32 s{sT0}, s{sW}, {8*QS}
v_add_u32 v{vT0}, s{sT0}, v{vL16}''')
for q in range(8):
    a(f'ds_write_b128 v{vT0}, {vr(ACA+4*q,4)} offset:{QS*q}')
a(f'''v_and_b32 v{vT1}, 7, v0
v_mul_u32_u24 v{vT1}, {QS}, v{vT1}
v_lshrrev_b32 v{vT2}, 3, v0
v_lshl_add_u32 v{vT1}, v{vT2}, 4, v{vT1}
s_mul_i32 s{sT0}, s{sC}, {32*QS}
s_lshl_b32 s{sT1}, s{sR4}, 7
s_add_u32 s{sT0}, s{sT0}, s{sT1}
v_add_u32 v{vT1}, s{sT0}, v{vT1}
v_mul_u32_u24 v{vT2}, 896, v{vT2}
v_and_b32 v{vT3}, 7, v0
v_lshl_add_u32 v{vT2}, v{vT3}, 4, v{vT2}
s_lshl_b32 s{sT0}, s{sRT}, 3
s_add_u32 s{sT0}, s{sT0}, s{sW}
s_mul_i32 s{sT0}, s{sT0}, {8*896}
s_lshl_b32 s{sT1}, s{sCT}, 7
s_add_u32 s{sT0}, s{sT0}, s{sT1}
s_mov_b64 {sp(sXA)}, {sp(P['out'])}
s_mov_b32 s{sXA+2}, {2048*896}
s_waitcnt lgkmcnt(0)
s_barrier''')
for k in range(4):
    for h in range(2):
        a(f'ds_read_b128 {vr(X+8*k+4*h,4)}, v{vT1} offset:{8*QS*k + 512*h}')
for k in range(1, 4):
    a(f's_waitcnt lgkmcnt({6-2*k})')
    for i in range(8): a(f'v_add_f32 v{X+i}, v{X+i}, v{X+8*k+i}')
for i in range(4): a(f'v_cvt_pk_bf16_f32 v{X+32+i}, v{X+2*i}, v{X+2*i+1}')
a(f'buffer_store_dwordx4 {vr(X+32,4)}, v{vT2}, {srd(sXA)}, s{sT0} offen')
stamp('end')
a.label('Lend')
a('s_endpgm')

hdr = open('cdna_kernels/' + NAME + '.s.ref').read().split('; Override launch')[0]
body = a.finalize()
out = hdr + f'''; @launch grid=(256,1,1) block=(512,1,1) lds={LDS_BYTES}
.amdgcn_target "amdgcn-amd-amdhsa--gfx950"
.text
.globl {NAME}_kernel
.p2align 8
.type {NAME}_kernel,@function
{NAME}_kernel:
{body}.section .rodata,"a"
.p2align 6
.amdhsa_kernel {NAME}_kernel
  .amdhsa_next_free_vgpr 256
  .amdhsa_next_free_sgpr 102
  .amdhsa_accum_offset 256
  .amdhsa_group_segment_fixed_size 0
  .amdhsa_kernarg_size 96
  .amdhsa_user_sgpr_count 2
  .amdhsa_user_sgpr_kernarg_segment_ptr 1
  .amdhsa_system_sgpr_workgroup_id_x 1
.end_amdhsa_kernel
'''
dst = [x for x in sys.argv[1:] if not x.startswith('--')]
open(dst[0] if dst else 'cdna_kernels/' + NAME + '.s', 'w').write(out)
```
